```python
import torch

def _softmax(x, axis=-1):
    return torch.softmax(x, dim=axis)
def _gelu(x):
    return torch.nn.functional.gelu(x, approximate="tanh")
def _silu(x):
    return torch.nn.functional.silu(x)
def _sigmoid(x):
    return torch.sigmoid(x)
def _layernorm(x, axis=-1, eps=1e-5):
    m = x.mean(dim=axis, keepdim=True)
    v = x.var(dim=axis, keepdim=True, unbiased=False)
    return (x - m) / torch.sqrt(v + eps)
def _scatter_add(tgt, idx, src, axis=0):
    return tgt.clone().index_add_(axis, idx, src)
def _segment_sum(src, seg, n):
    out = torch.zeros((n,) + src.shape[1:], dtype=src.dtype)
    return out.index_add_(0, seg, src)
def _pad(x, pw):
    flat = tuple(v for pair in reversed(pw) for v in pair)
    return torch.nn.functional.pad(x, flat)

kernel_name = 'concat_heads__gqa_block_cached__gqa_block_cached__near_ridge'

def setup_inputs():

    _w = (lambda a: (lambda t: t.to(torch.bfloat16) if t.is_floating_point() else t)(torch.as_tensor(a)))
    def _A_setup():
        B, Sq, D = 8, 96, 576
        Hq, Hkv, Sk, Dh = 32, 16, 1024, 128
        assert Hq % Hkv == 0, (Hq, Hkv)
        return {
            "x": _w((lambda *s: torch.randn(*s, dtype=torch.bfloat16) * 0.8)(B, Sq, D)),
            "k_cache": _w((lambda *s: torch.randn(*s, dtype=torch.bfloat16) * 0.8)(B, Hkv, Sk, Dh)),
            "v_cache": _w((lambda *s: torch.randn(*s, dtype=torch.bfloat16) * 0.05)(B, Hkv, Sk, Dh)),
            "wq": _w((lambda *s: torch.randn(*s, dtype=torch.bfloat16) * 0.8)(D, Hq * Dh) * (D ** -0.5)),
            "wo": _w((lambda *s: torch.randn(*s, dtype=torch.bfloat16) * 0.05)(Hq * Dh, D) * ((Hq * Dh) ** -0.5)),
        }
    _A_in = _A_setup()

    def _B_setup():
        B, Sq, D = 8, 96, 576
        Hq, Hkv, Sk, Dh = 32, 16, 1024, 128
        assert Hq % Hkv == 0, (Hq, Hkv)
        return {
            "x": _w((lambda *s: torch.randn(*s, dtype=torch.bfloat16) * 0.8)(B, Sq, D)),
            "k_cache": _w((lambda *s: torch.randn(*s, dtype=torch.bfloat16) * 0.8)(B, Hkv, Sk, Dh)),
            "v_cache": _w((lambda *s: torch.randn(*s, dtype=torch.bfloat16) * 0.05)(B, Hkv, Sk, Dh)),
            "wq": _w((lambda *s: torch.randn(*s, dtype=torch.bfloat16) * 0.8)(D, Hq * Dh) * (D ** -0.5)),
            "wo": _w((lambda *s: torch.randn(*s, dtype=torch.bfloat16) * 0.05)(Hq * Dh, D) * ((Hq * Dh) ** -0.5)),
        }
    _B_in = _B_setup()

    return {
        "A_x": _A_in["x"],
        "A_k_cache": _A_in["k_cache"],
        "A_v_cache": _A_in["v_cache"],
        "A_wq": _A_in["wq"],
        "A_wo": _A_in["wo"],
        "B_x": _B_in["x"],
        "B_k_cache": _B_in["k_cache"],
        "B_v_cache": _B_in["v_cache"],
        "B_wq": _B_in["wq"],
        "B_wo": _B_in["wo"],
    }

def reference(A_x, A_k_cache, A_v_cache, A_wq, A_wo, B_x, B_k_cache, B_v_cache, B_wq, B_wo):
    def _A_ref(x, k_cache, v_cache, wq, wo):
        B, Sq, D = x.shape
        Hq, Dh = 32, 128
        Hkv = k_cache.shape[1]
        rep = Hq // Hkv
        q = (lambda x, *d: x.permute(*d))((x @ wq).reshape(B, Sq, Hq, Dh), 0, 2, 1, 3)
        k = (lambda x, n, axis: torch.repeat_interleave(x, n, dim=axis))(k_cache, rep, axis=1)
        v = (lambda x, n, axis: torch.repeat_interleave(x, n, dim=axis))(v_cache, rep, axis=1)
        scores = torch.einsum("bhqd,bhkd->bhqk", q, k) * (Dh ** -0.5)
        p = _softmax(scores, axis=-1)
        o = torch.einsum("bhqk,bhkd->bhqd", p, v)
        return (lambda x, *d: x.permute(*d))(o, 0, 2, 1, 3).reshape(B, Sq, Hq * Dh) @ wo

    def _B_ref(x, k_cache, v_cache, wq, wo):
        B, Sq, D = x.shape
        Hq, Dh = 32, 128
        Hkv = k_cache.shape[1]
        rep = Hq // Hkv
        q = (lambda x, *d: x.permute(*d))((x @ wq).reshape(B, Sq, Hq, Dh), 0, 2, 1, 3)
        k = (lambda x, n, axis: torch.repeat_interleave(x, n, dim=axis))(k_cache, rep, axis=1)
        v = (lambda x, n, axis: torch.repeat_interleave(x, n, dim=axis))(v_cache, rep, axis=1)
        scores = torch.einsum("bhqd,bhkd->bhqk", q, k) * (Dh ** -0.5)
        p = _softmax(scores, axis=-1)
        o = torch.einsum("bhqk,bhkd->bhqd", p, v)
        return (lambda x, *d: x.permute(*d))(o, 0, 2, 1, 3).reshape(B, Sq, Hq * Dh) @ wo

    a = _A_ref(A_x, A_k_cache, A_v_cache, A_wq, A_wo)
    b = _B_ref(B_x, B_k_cache, B_v_cache, B_wq, B_wo)
    return torch.concatenate([a, b], axis=-1)
```

```python
import re

REG = re.compile(r'^(v|a|s)(\d+)$|^(v|a|s)\[(\d+):(\d+)\]$')

def regs_of(op):
    op = op.strip()
    neg = op.lstrip('-')
    if neg.startswith('abs(') : neg = neg[4:-1]
    if neg.startswith('|'): neg = neg.strip('|')
    m = REG.match(neg)
    if m:
        if m.group(1): return {(m.group(1), int(m.group(2)))}
        return {(m.group(3), i) for i in range(int(m.group(4)), int(m.group(5)) + 1)}
    if neg == 'vcc': return {('x', 'vcc')}
    if neg == 'exec': return {('x', 'exec')}
    if neg == 'm0': return {('x', 'm0')}
    return set()

TRANS = ('v_exp_', 'v_log_', 'v_rcp_', 'v_rsq_', 'v_sqrt_', 'v_sin_', 'v_cos_')

class Inst:
    __slots__ = ('text', 'op', 'kind', 'rd', 'wr', 'srcC', 'passes', 'nops', 'ab', 'tag')
    def __init__(self, text):
        self.text = text
        t = text.split(';')[0].strip()
        parts = t.split(None, 1)
        self.op = op = parts[0]
        rest = parts[1] if len(parts) > 1 else ''
        ops = [o.strip() for o in rest.split(',')] if rest else []
        mods = ''
        if ops:
            l = ops[-1].split()
            ops[-1] = l[0]; mods = ' '.join(l[1:])
        R = [regs_of(o) for o in ops]
        U = lambda xs: set().union(*xs) if xs else set()
        self.rd, self.wr, self.srcC, self.ab = set(), set(), set(), set()
        self.passes = 0; self.nops = 1; self.tag = None
        if op.startswith('v_mfma'):
            self.kind = 'mfma'; self.wr = R[0]; self.ab = R[1] | R[2]; self.srcC = R[3]; self.rd = self.ab | self.srcC
            self.passes = 8 if '32x32' in op else 4
        elif op.startswith('v_cmp'):
            self.kind = 'valu'; self.wr = R[0]; self.rd = U(R[1:])
        elif op.startswith('v_permlane'):
            self.kind = 'perm'; self.wr = R[0] | R[1]; self.rd = R[0] | R[1]
        elif op.startswith('v_readfirstlane') or op.startswith('v_readlane'):
            self.kind = 'rdlane'; self.wr = R[0]; self.rd = U(R[1:])
        elif op.startswith('v_'):
            self.kind = 'trans' if op.startswith(TRANS) else 'valu'
            self.wr = R[0]; self.rd = U(R[1:])
            if op.startswith(('v_fmac', 'v_pk_fmac')): self.rd |= R[0]
            if op.startswith('v_cndmask') and len(ops) == 3: self.rd |= {('x', 'vcc')}
            if '_co_' in op: self.wr |= R[1]; self.rd = U(R[2:])
        elif op.startswith('ds_read') or op.startswith('ds_bpermute'):
            self.kind = 'ds'; self.wr = R[0]; self.rd = U(R[1:])
        elif op.startswith('ds_'):
            self.kind = 'ds'; self.rd = U(R)
        elif op.startswith(('buffer_load', 'global_load')):
            self.kind = 'vmem'
            if ' lds' in (' ' + mods) or 'load_lds' in op:
                self.rd = U(R) | {('x', 'm0')}; self.kind = 'dma'
            else:
                self.wr = R[0]; self.rd = U(R[1:])
        elif op.startswith(('buffer_store', 'global_store')):
            self.kind = 'store'; self.rd = U(R)
            if op.endswith(('x3', 'x4')):
                self.srcC = R[0] if op.startswith('buffer') else R[1]
        elif op.startswith(('buffer_atomic', 'global_atomic')):
            self.kind = 'vmem'; self.rd = U(R)
            if 'sc0' in mods: self.wr = R[0]
        elif op.startswith(('buffer_wbl2', 'buffer_inv')):
            self.kind = 'vmem'
        elif op == 's_nop':
            self.kind = 'nop'; self.nops = int(ops[0]) + 1
        elif op.startswith(('s_waitcnt', 's_barrier', 's_branch', 's_cbranch', 's_endpgm', 's_setprio', 's_sleep', 's_cmp', 's_setpc', 's_bitcmp')):
            self.kind = 'salu'; self.rd = U(R)
            if 'vcc' in op: self.rd |= {('x', 'vcc')}
        elif op.startswith(('s_load', 's_buffer_load', 's_memtime', 's_memrealtime')):
            self.kind = 'smem'; self.wr = R[0]; self.rd = U(R[1:])
        elif op.startswith('s_'):
            self.kind = 'salu'; self.wr = R[0]; self.rd = U(R[1:])
            if 'saveexec' in op: self.wr |= {('x', 'exec')}
        else:
            raise ValueError('unknown instruction ' + text)

VALU = ('valu', 'trans', 'perm', 'rdlane')
MEM = ('ds', 'vmem', 'dma', 'store')

def need(p, c):
    n = 0
    vw = {r for r in p.wr if r[0] in 'va'}
    sw = {r for r in p.wr if r[0] in 'sx'}
    if p.kind == 'mfma':
        big = 12 if p.passes == 8 else 8
        if c.kind == 'mfma':
            if p.wr & c.ab: n = max(n, big)
            if p.wr & c.srcC and not (p.wr == c.srcC and p.passes == c.passes): n = max(n, 10 if p.passes == 8 else 6)
            if p.wr & c.wr and not (p.wr & c.srcC) : n = max(n, big)
        elif c.kind in VALU or c.kind in MEM:
            if p.wr & (c.rd | c.wr): n = max(n, big)
            if c.kind in VALU and p.srcC & c.wr: n = max(n, 7 if p.passes == 8 else 3)
    if p.kind in VALU:
        if c.kind == 'mfma' and vw & c.rd: n = max(n, 2)
        if c.kind == 'perm' and vw & c.rd: n = max(n, 2)
        if c.kind == 'rdlane' and vw & c.rd: n = max(n, 1)
        if p.kind == 'trans' and c.kind in VALU and c.kind != 'trans' and vw & c.rd: n = max(n, 1)
        if p.kind == 'trans' and c.kind in ('trans',) and vw & c.rd: n = max(n, 1)
        if p.kind == 'trans' and c.kind in MEM and vw & c.rd: n = max(n, 1)
        if c.kind in ('vmem', 'dma', 'store') and sw & c.rd: n = max(n, 5)
        if c.kind in VALU and sw & c.rd: n = max(n, 2)
        if c.kind == 'salu' and sw & c.rd: n = max(n, 1)
        if 'dpp' in c.text and vw & c.rd: n = max(n, 2)
    if p.kind == 'salu' and ('x', 'm0') in p.wr and c.kind == 'dma': n = max(n, 1)
    if p.kind == 'store' and p.srcC & c.wr: n = max(n, 2)
    return n

class Asm:
    def __init__(self):
        self.items = []
        self.autonop = True
        self.inserted = 0
        self.hist = []
    def raw(self, s): self.items.append(s)
    def label(self, name, reset=False):
        self.items.append(name + ':')
        if reset: self.hist = []
    def comment(self, s): self.items.append('; ' + s)
    def __call__(self, text, tag=None):
        for line in text.split('\n'):
            line = line.strip()
            if not line: continue
            i = Inst(line); i.tag = tag
            if self.autonop:
                dist = 0; pad = 0
                for p in reversed(self.hist):
                    pad = max(pad, need(p, i) - dist)
                    dist += p.nops
                    if dist >= 24: break
                if pad > 0:
                    self.inserted += 1
                    nop = Inst(f's_nop {pad - 1}')
                    nop.text += f'   ; pad before {i.op}'
                    self.items.append(nop); self.hist.append(nop)
            self.items.append(i); self.hist.append(i)
            if len(self.hist) > 64: self.hist = self.hist[-40:]
    def text(self):
        out = []
        for it in self.items:
            if isinstance(it, Inst): out.append('    ' + it.text)
            else: out.append(it)
        return '\n'.join(out) + '\n'
    def segment(self, a, b):
        ia = self.items.index(a + ':') if a else 0
        ib = self.items.index(b + ':') if b else len(self.items)
        return [x for x in self.items[ia:ib] if isinstance(x, Inst)]

def check_trace(insts, name=''):
    bad = 0
    for k, c in enumerate(insts):
        dist = 0
        for p in reversed(insts[max(0, k - 24):k]):
            if need(p, c) > dist:
                print(f'HAZARD {name}: [{p.text}] -> [{c.text}] need {need(p, c)} have {dist}'); bad += 1
            dist += p.nops
            if dist >= 24: break
    return bad

def v(i, n=1): return f'v{i}' if n == 1 else f'v[{i}:{i + n - 1}]'
def a(i, n=1): return f'a{i}' if n == 1 else f'a[{i}:{i + n - 1}]'
def s(i, n=1): return f's{i}' if n == 1 else f's[{i}:{i + n - 1}]'
```

```python
import sys, math
from asmlib import Asm, check_trace, v, a, s

NAME = 'concat_heads__gqa_block_cached__gqa_block_cached__near_ridge'
OPT = dict(stamps=0)
for arg in sys.argv[2:]:
    k, val = arg.split('='); OPT[k] = int(val)

X_BYTES = 96 * 576 * 2
W_BYTES = 576 * 4096 * 2
KV_BYTES = 1024 * 128 * 2
O_GROUP = 6 * 32 * 4 * 1024
OUT_BYTES = 8 * 96 * 1152 * 2
STAMP_OFF = 64 << 20

MF = 'v_mfma_f32_16x16x32_bf16'

def srd(A, r, base_lo, base_hi, size):
    A(f's_mov_b32 s{r}, {base_lo}')
    A(f's_and_b32 s{r+1}, {base_hi}, 0xffff')
    A(f's_mov_b32 s{r+2}, {size}')
    A(f's_mov_b32 s{r+3}, 0x20000')

def load_kernargs(A):
    A('s_load_dwordx16 s[4:19], s[0:1], 0')
    A('s_load_dwordx8 s[20:27], s[0:1], 64')
    A('s_load_dwordx2 s[28:29], s[0:1], 96')

class Stamps:
    def __init__(self, A, kernel_idx, sreg=88, vreg=254):
        self.A, self.k, self.n, self.sr, self.vr = A, kernel_idx, 0, sreg, vreg
    def setup(self, s_wave):
        if not OPT['stamps']: return
        A, sr = self.A, self.sr
        A(f's_add_u32 s{sr}, s28, {STAMP_OFF + self.k * (1 << 20)}')
        A(f's_addc_u32 s{sr+1}, s29, 0')
        A(f's_and_b32 s{sr+1}, s{sr+1}, 0xffff')
        A(f's_mov_b32 s{sr+2}, {1 << 20}')
        A(f's_mov_b32 s{sr+3}, 0x20000')
        A(f's_lshl_b32 s{sr+4}, s2, 2')
        A(f's_add_u32 s{sr+4}, s{sr+4}, s{s_wave}')
        A(f's_lshl_b32 s{sr+4}, s{sr+4}, 8')
    def hit(self):
        if not OPT['stamps']: return
        A, sr, vr = self.A, self.sr, self.vr
        A(f's_memrealtime s[{sr+6}:{sr+7}]')
        A(f's_memtime s[{sr+8}:{sr+9}]')
        A('s_waitcnt lgkmcnt(0)')
        A(f'v_mov_b32 v{vr}, s{sr+6}')
        A(f'v_mov_b32 v{vr+1}, s{sr+8}')
        A(f'buffer_store_dwordx2 v[{vr}:{vr+1}], off, s[{sr}:{sr+3}], s{sr+4} offset:{8 * self.n}', tag='stamp')
        self.n += 1

V_KA, V_VA = 4, 8
V_S, V_NM, V_P, V_O, V_L, V_Q = 16, 40, 52, 64, 160, 172
V_DK, V_DV = 220, 222
V_QA, V_QB, V_DW, V_DX = 224, 232, 234, 238
V_T = 241
A_K, A_V, A_ONE = 0, 32, 64
S_X, S_WQ, S_K, S_V, S_O = 32, 36, 40, 44, 48
S_W, S_QH, S_RH, S_BR, S_HKV, S_B = 52, 53, 54, 55, 56, 57
S_GOFF, S_DBASE, S_IT, S_TMP, S_M0W, S_M0X, S_WOFF, S_XOFF = 58, 59, 60, 61, 62, 63, 64, 65
S_C64K = 66
LDS_WQ, LDS_X = 65536, 131072

def Sreg(j, i): return V_S + 8 * j + i
def Oreg(j, u): return V_O + (8 * j + u) * 4
def Qreg(j, st): return V_Q + (4 * j + st) * 4

def k1_prologue(A, ST):
    A('s_cmp_ge_u32 s2, 256')
    A('s_cbranch_scc1 L1_end')
    load_kernargs(A)
    A('v_lshrrev_b32 v1, 6, v0')
    A('v_and_b32 v0, 63, v0')
    A(f'v_readfirstlane_b32 s{S_W}, v1')
    A(f's_and_b32 s3, s2, 7')
    A(f's_lshr_b32 s{S_BR}, s3, 2')
    A(f's_and_b32 s3, s3, 3')
    A(f's_lshl_b32 s3, s3, 2')
    A(f's_lshr_b32 s{S_TMP}, s2, 3')
    A(f's_lshr_b32 s{S_B}, s{S_TMP}, 2')
    A(f's_and_b32 s{S_TMP}, s{S_TMP}, 3')
    A(f's_add_u32 s{S_HKV}, s3, s{S_TMP}')
    A(f's_and_b32 s{S_QH}, s{S_W}, 1')
    A(f's_lshr_b32 s{S_RH}, s{S_W}, 1')
    A(f's_mov_b32 s{S_C64K}, 0x10000')
    T = V_T
    A('v_and_b32 v1, 15, v0')
    A('v_lshrrev_b32 v2, 4, v0')
    A('v_bfe_u32 v3, v0, 2, 2')
    A(f'v_and_b32 v{T}, 3, v0')
    A(f'v_lshrrev_b32 v{T+1}, 5, v0')
    A(f'v_and_b32 v{T+2}, 31, v0')
    A(f's_lshl_b32 s3, s{S_W}, 3')
    A(f's_lshl_b32 s{S_TMP}, s{S_QH}, 2')
    for i in range(4):
        A(f'v_add_u32 v{T+3}, {2*i}, v{T+1}')
        A(f'v_and_b32 v{T+4}, 3, v{T+3}')
        A(f'v_or_b32 v{T+4}, s{S_TMP}, v{T+4}')
        A(f'v_lshlrev_b32 v{T+4}, 1, v{T+4}')
        A(f'v_xor_b32 v{T+4}, v{T+4}, v{T+2}')
        A(f'v_add_u32 v{T+3}, s3, v{T+3}')
        A(f'v_lshlrev_b32 v{T+3}, 13, v{T+3}')
        A(f'v_lshl_add_u32 v{V_DW+i}, v{T+4}, 4, v{T+3}')
        if i: A(f'v_subrev_u32 v{V_DW+i}, {1024*i}, v{V_DW+i}')
    A(f'v_lshrrev_b32 v{T+1}, 3, v0')
    A(f'v_and_b32 v{T+2}, 7, v0')
    A(f's_mul_i32 s3, s{S_W}, 24')
    A(f's_movk_i32 s{S_TMP}, 1152')
    for i in range(3):
        A(f'v_add_u32 v{T+3}, s3, v{T+1}')
        if i: A(f'v_add_u32 v{T+3}, {8*i}, v{T+3}')
        A(f'v_bfe_u32 v{T+4}, v{T+3}, 1, 3')
        A(f'v_xor_b32 v{T+4}, v{T+4}, v{T+2}')
        A(f'v_mul_lo_u32 v{T+3}, v{T+3}, s{S_TMP}')
        A(f'v_lshl_add_u32 v{V_DX+i}, v{T+4}, 4, v{T+3}')
        if i: A(f'v_subrev_u32 v{V_DX+i}, {1024*i}, v{V_DX+i}')
    A('s_waitcnt lgkmcnt(0)')
    A(f's_cmp_eq_u32 s{S_BR}, 0')
    A('s_cselect_b32 s4, s4, s14');  A('s_cselect_b32 s5, s5, s15')
    A('s_cselect_b32 s6, s6, s16');  A('s_cselect_b32 s7, s7, s17')
    A('s_cselect_b32 s8, s8, s18');  A('s_cselect_b32 s9, s9, s19')
    A('s_cselect_b32 s10, s10, s20'); A('s_cselect_b32 s11, s11, s21')
    A(f's_mul_i32 s3, s{S_B}, {X_BYTES}')
    A('s_add_u32 s4, s4, s3'); A('s_addc_u32 s5, s5, 0')
    srd(A, S_X, 's4', 's5', X_BYTES)
    A(f's_lshl_b32 s3, s{S_HKV}, 9')
    A('s_add_u32 s10, s10, s3'); A('s_addc_u32 s11, s11, 0')
    srd(A, S_WQ, 's10', 's11', W_BYTES)
    A(f's_sub_u32 s{S_WQ+2}, s{S_WQ+2}, s3')
    A(f's_lshl_b32 s{S_M0W}, s{S_W}, 12')
    A(f's_add_u32 s{S_M0W}, s{S_M0W}, {LDS_WQ}')
    A(f's_mul_i32 s{S_M0X}, s{S_W}, 3072')
    A(f's_add_u32 s{S_M0X}, s{S_M0X}, {LDS_X}')
    ST.setup(S_W)
    ST.hit()

def dma_wq(A, c):
    out = [f's_add_u32 m0, s{S_M0W}, {16384 * (c & 3)}', f's_mov_b32 s{S_WOFF}, {c * 262144}']
    for i in range(4):
        out.append(f'buffer_load_dwordx4 v{V_DW+i}, s[{S_WQ}:{S_WQ+3}], s{S_WOFF} offen offset:{1024*i} lds')
    return out

def dma_x(A, c2):
    out = [f's_add_u32 m0, s{S_M0X}, {12288 * (c2 & 1)}', f's_movk_i32 s{S_XOFF}, {c2 * 128}']
    for i in range(3):
        out.append(f'buffer_load_dwordx4 v{V_DX+i}, s[{S_X}:{S_X+3}], s{S_XOFF} offen offset:{1024*i} lds')
    return out

def dma_kv_static(t):
    base = (t >> 2) * 65536 + (t & 3) * 8192
    out = [f's_add_u32 m0, s{S_DBASE}, {base}', f's_mov_b32 s{S_GOFF}, {t * 8192}']
    for i in range(2):
        out.append(f'buffer_load_dwordx4 v{V_DK+i}, s[{S_K}:{S_K+3}], s{S_GOFF} offen offset:{1024*i} lds')
    out.append(f's_add_u32 m0, s{S_DBASE}, {base + 32768}')
    out.append('s_nop 0')
    for i in range(2):
        out.append(f'buffer_load_dwordx4 v{V_DV+i}, s[{S_V}:{S_V+3}], s{S_GOFF} offen offset:{1024*i} lds')
    return out

class VM:
    def __init__(self): self.q = []
    def issue(self, tag, n=1): self.q += [tag] * n
    def count_after(self, tags):
        last = max((i for i, t in enumerate(self.q) if t in tags), default=-1)
        return len(self.q) - 1 - last

def emit_list(A, lst, vm=None, tag=None):
    for x in lst:
        A(x)
        if vm is not None and x.startswith('buffer_'): vm.issue(tag)

def k1_setup2(A):
    T = V_T
    A(f's_lshl_b32 s3, s{S_B}, 4')
    A(f's_add_u32 s3, s3, s{S_HKV}')
    A(f's_lshl_b32 s3, s3, 18')
    A('s_add_u32 s6, s6, s3'); A('s_addc_u32 s7, s7, 0')
    A('s_add_u32 s8, s8, s3'); A('s_addc_u32 s9, s9, 0')
    srd(A, S_K, 's6', 's7', KV_BYTES)
    srd(A, S_V, 's8', 's9', KV_BYTES)
    A(f's_lshl_b32 s{S_DBASE}, s{S_W}, 11')
    A(f's_lshl_b32 s3, s{S_BR}, 3')
    A(f's_add_u32 s3, s3, s{S_B}')
    A(f's_mul_i32 s3, s3, {O_GROUP}')
    A(f's_mul_i32 s{S_TMP}, s{S_RH}, {3 * 131072}')
    A(f's_add_u32 s3, s3, s{S_TMP}')
    A(f's_lshl_b32 s{S_TMP}, s{S_HKV}, 1')
    A(f's_add_u32 s{S_TMP}, s{S_TMP}, s{S_QH}')
    A(f's_lshl_b32 s{S_TMP}, s{S_TMP}, 12')
    A(f's_add_u32 s3, s3, s{S_TMP}')
    A(f's_add_u32 s30, s28, s3'); A('s_addc_u32 s31, s29, 0')
    srd(A, S_O, 's30', 's31', 2 * 131072 + 4096)
    A(f's_lshl_b32 s3, s{S_W}, 3')
    for i in range(2):
        A(f'v_add_u32 v{T+1}, s3, v2')
        if i: A(f'v_add_u32 v{T+1}, 4, v{T+1}')
        A(f'v_and_b32 v{T+2}, 15, v{T+1}')
        A(f'v_xor_b32 v{T+2}, v{T+2}, v1')
        A(f'v_lshlrev_b32 v{T+3}, 8, v{T+1}')
        if i: A(f'v_subrev_u32 v{T+3}, 1024, v{T+3}')
        A(f'v_lshl_add_u32 v{V_DK+i}, v{T+2}, 4, v{T+3}')
        A(f'v_and_b32 v{T+2}, 7, v{T+1}')
        A(f'v_lshlrev_b32 v{T+2}, 1, v{T+2}')
        A(f'v_xor_b32 v{T+2}, v{T+2}, v1')
        A(f'v_lshl_add_u32 v{V_DV+i}, v{T+2}, 4, v{T+3}')
    A(f'v_lshl_add_u32 v{T+1}, v2, 3, v3')
    A(f'v_lshlrev_b32 v{T+1}, 9, v{T+1}')
    A(f'v_and_b32 v{T+2}, 1, v{T}')
    A(f'v_lshl_add_u32 v{T+1}, v{T+2}, 3, v{T+1}')
    A(f's_lshl_b32 s3, s{S_QH}, 8')
    A(f's_add_u32 s3, s3, {LDS_WQ}')
    A(f'v_add_u32 v{T+1}, s3, v{T+1}')
    A(f'v_and_b32 v{T+2}, 1, v2')
    A(f'v_lshl_add_u32 v{T+2}, v{T+2}, 2, v3')
    A(f'v_lshrrev_b32 v{T+3}, 1, v{T}')
    for u in range(8):
        A(f'v_xor_b32 v{T+4}, {u}, v{T+2}')
        A(f'v_lshl_add_u32 v{T+4}, v{T+4}, 1, v{T+3}')
        A(f'v_lshl_add_u32 v{V_QA+u}, v{T+4}, 4, v{T+1}')
    A(f's_mul_i32 s3, s{S_RH}, {48 * 128}')
    A(f's_add_u32 s3, s3, {LDS_X}')
    A(f'v_lshlrev_b32 v{T+1}, 7, v1')
    A(f'v_add_u32 v{T+1}, s3, v{T+1}')
    A(f'v_lshrrev_b32 v{T+2}, 1, v1')
    for ks in range(2):
        A(f'v_add_u32 v{T+3}, {4*ks}, v2')
        A(f'v_xor_b32 v{T+3}, v{T+3}, v{T+2}')
        A(f'v_lshl_add_u32 v{V_QB+ks}, v{T+3}, 4, v{T+1}')
    A(f'v_lshlrev_b32 v{T+1}, 8, v1')
    for st in range(4):
        A(f'v_add_u32 v{T+3}, {4*st}, v2')
        A(f'v_xor_b32 v{T+3}, v{T+3}, v1')
        A(f'v_lshl_add_u32 v{V_KA+st}, v{T+3}, 4, v{T+1}')
    A(f'v_lshl_add_u32 v{T+1}, v2, 2, v3')
    A(f'v_and_b32 v{T+2}, 7, v{T+1}')
    A(f'v_lshlrev_b32 v{T+1}, 8, v{T+1}')
    A(f'v_and_b32 v{T+4}, 1, v{T}')
    A(f'v_lshl_add_u32 v{T+1}, v{T+4}, 3, v{T+1}')
    A(f'v_add_u32 v{T+1}, 0x8000, v{T+1}')
    A(f'v_lshrrev_b32 v{T+3}, 1, v{T}')
    for u in range(8):
        A(f'v_xor_b32 v{T+4}, {u}, v{T+2}')
        A(f'v_lshl_add_u32 v{T+4}, v{T+4}, 1, v{T+3}')
        A(f'v_lshl_add_u32 v{V_VA+u}, v{T+4}, 4, v{T+1}')
    A(f'v_mov_b32 v{T+1}, 0x3f803f80')
    for i in range(4): A(f'v_accvgpr_write_b32 a{A_ONE+i}, v{T+1}')

def qp_reads_A(c):
    out = []
    for u in range(8):
        for jj in range(2):
            out.append(f'ds_read_b64_tr_b16 {a(32*(c&1) + 4*u + 2*jj, 2)}, v{V_QA+u} offset:{16384*(c&3) + 2048*jj}')
    return out

def qp_reads_B(c2):
    out = []
    for ks in range(2):
        for j in range(3):
            out.append(f'ds_read_b128 {v(V_S + 24*(c2&1) + 12*ks + 4*j, 4)}, v{V_QB+ks} offset:{12288*(c2&1) + 2048*j}')
    return out

def interleave(A, mfmas, fillers, vm=None, start=0, per_gap=2):
    fi = 0
    for k, m in enumerate(mfmas):
        A(m)
        if k < start: continue
        n = 0
        while fi < len(fillers) and n < per_gap:
            t, tag = fillers[fi]; fi += 1
            A(t)
            if t.startswith('buffer_') and vm is not None: vm.issue(tag)
            if not t.startswith('s_'): n += 1
    while fi < len(fillers):
        t, tag = fillers[fi]; fi += 1
        A(t)
        if t.startswith('buffer_') and vm is not None: vm.issue(tag)

def k1_qproj(A, ST):
    vm = VM()
    if OPT['stamps']: vm.issue('stamp')
    emit_list(A, dma_x(A, 0), vm, ('x', 0))
    emit_list(A, dma_wq(A, 0), vm, ('w', 0))
    emit_list(A, dma_wq(A, 1), vm, ('w', 1))
    emit_list(A, dma_x(A, 1), vm, ('x', 1))
    emit_list(A, dma_wq(A, 2), vm, ('w', 2))
    emit_list(A, dma_wq(A, 3), vm, ('w', 3))
    k1_setup2(A)
    A(f's_waitcnt vmcnt({vm.count_after([("x", 0), ("w", 0)])})')
    A('s_barrier')
    ST.hit(); OPT['stamps'] and vm.issue('stamp')
    for r in qp_reads_B(0) + qp_reads_A(0): A(r)
    for c in range(18):
        need_tags = [('w', c + 1)] + ([('x', (c + 1) // 2)] if c % 2 == 1 else [])
        if c < 17:
            A(f's_waitcnt vmcnt({vm.count_after(need_tags)}) lgkmcnt(0)')
        else:
            A('s_waitcnt lgkmcnt(0)')
        A('s_barrier')
        fill = []
        reads = []
        if c < 17:
            if c % 2 == 1: reads += qp_reads_B((c + 1) // 2)
            reads += qp_reads_A(c + 1)
        dm = []
        if c % 2 == 0 and c // 2 + 2 <= 8: dm += [(x, ('x', c // 2 + 2)) for x in dma_x(A, c // 2 + 2)]
        if c + 4 <= 17: dm += [(x, ('w', c + 4)) for x in dma_wq(A, c + 4)]
        if c >= 14: dm += [(x, ('kv', c - 14)) for x in dma_kv_static(c - 14)]
        if c == 17:
            for t in range(4, 8): dm += [(x, ('kv', t)) for x in dma_kv_static(t)]
        mf = []
        ks = c & 1; p = (c // 2) & 1
        for u in range(8):
            for j in range(3):
                C = '0' if c == 0 else v(Oreg(j, u), 4)
                mf.append(f'{MF} {v(Oreg(j,u),4)}, {a(32*(c&1)+4*u,4)}, {v(V_S + 24*p + 12*ks + 4*j,4)}, {C}')
        ri = di = 0
        for k, m in enumerate(mf):
            A(m)
            if k % 2 == 0 or di >= len(dm):
                for _ in range(2):
                    if ri < len(reads): A(reads[ri]); ri += 1
            else:
                n = 0
                while di < len(dm) and n < 1:
                    t, tag = dm[di]; di += 1
                    A(t)
                    if t.startswith('buffer_'): vm.issue(tag); n += 1
        while ri < len(reads): A(reads[ri]); ri += 1
        while di < len(dm):
            t, tag = dm[di]; di += 1
            A(t)
            if t.startswith('buffer_'): vm.issue(tag)
    ST.hit(); OPT['stamps'] and vm.issue('stamp')
    c_scale = math.log2(math.e) / math.sqrt(128.0)
    import struct
    bits = struct.unpack('<I', struct.pack('<f', c_scale))[0]
    A(f's_mov_b32 s{S_TMP+6}, {bits:#x}')
    A(f's_mov_b32 s{S_TMP+7}, {bits:#x}')
    sc = S_TMP + 7
    assert sc % 2 == 0
    A(f's_mov_b32 s{sc+1}, {bits:#x}')
    groups = [(j, st) for j in range(3) for st in range(4)]
    def mul(j, st):
        o = Oreg(j, 2 * st)
        return [f'v_pk_mul_f32 {v(o+2*i,2)}, {v(o+2*i,2)}, s[{sc}:{sc+1}]' for i in range(4)]
    def cvt(j, st):
        o = Oreg(j, 2 * st); q = Qreg(j, st)
        return [f'v_cvt_pk_bf16_f32 v{q+i}, v{o+2*i}, v{o+2*i+1}' for i in range(4)]
    def sw32(j, st):
        q = Qreg(j, st); return [f'v_permlane32_swap_b32 v{q+i}, v{q+2+i}' for i in range(2)]
    def sw16(j, st):
        q = Qreg(j, st); return [f'v_permlane16_swap_b32 v{q+i}, v{q+2+i}' for i in range(2)]
    stages = [mul, cvt, sw32, sw16]
    for n in range(len(groups) + 3):
        for si, f in enumerate(stages):
            k = n - si
            if 0 <= k < len(groups):
                for x in f(*groups[k]): A(x)
    return vm

def QK(j, first=False):
    out = []
    for ksub in range(2):
        for st in range(4):
            d = v(Sreg(j, 4 * ksub), 4)
            C = d if st else ('0' if first else v(V_NM + 4 * j, 4))
            out.append(f'{MF} {d}, {a(A_K + 4*(4*ksub+st), 4)}, {v(Qreg(j, st), 4)}, {C}')
    return out
def PV(j, first=False):
    out = []
    for u in range(8):
        d = v(Oreg(j, u), 4)
        out.append(f'{MF} {d}, {a(A_V + 4*u, 4)}, {v(V_P + 4*j, 4)}, {"0" if first else d}')
    d = v(V_L + 4 * j, 4)
    out.append(f'{MF} {d}, {a(A_ONE, 4)}, {v(V_P + 4*j, 4)}, {"0" if first else d}')
    return out
def E(j, i): return f'v_exp_f32 v{Sreg(j,i)}, v{Sreg(j,i)}'
def Cv(j, k): return f'v_cvt_pk_bf16_f32 v{V_P + 4*j + k}, v{Sreg(j,2*k)}, v{Sreg(j,2*k+1)}'
def Kr(f, q4): return f'ds_read_b128 {a(A_K + 4*f, 4)}, v{V_KA + (f & 3)} offset:{8192*q4 + 4096*(f >> 2)}'
def Vr(u, jj, q4): return f'ds_read_b64_tr_b16 {a(A_V + 4*u + 2*jj, 2)}, v{V_VA+u} offset:{8192*q4 + 4096*jj}'
def kv_dma(q4):
    return ([f's_add_u32 m0, s{S_DBASE}, {8192*q4}',
             f'buffer_load_dwordx4 v{V_DK}, s[{S_K}:{S_K+3}], s{S_GOFF} offen lds'],
            [f'buffer_load_dwordx4 v{V_DK+1}, s[{S_K}:{S_K+3}], s{S_GOFF} offen offset:1024 lds'],
            [f's_add_u32 m0, s{S_DBASE}, {8192*q4 + 32768}',
             f'buffer_load_dwordx4 v{V_DV}, s[{S_V}:{S_V+3}], s{S_GOFF} offen lds'],
            [f'buffer_load_dwordx4 v{V_DV+1}, s[{S_V}:{S_V+3}], s{S_GOFF} offen offset:1024 lds'])

def softmax_first(A, j):
    T = V_T
    r = lambda i: f'v{Sreg(j,i)}'
    A(f'v_max3_f32 v{T}, {r(0)}, {r(1)}, {r(2)}')
    A(f'v_max3_f32 v{T+1}, {r(3)}, {r(4)}, {r(5)}')
    A(f'v_max3_f32 v{T}, v{T}, {r(6)}, {r(7)}')
    A(f'v_max_f32 v{T}, v{T}, v{T+1}')
    A(f'v_mov_b32 v{T+1}, v{T}')
    A(f'v_permlane16_swap_b32 v{T}, v{T+1}')
    A(f'v_max_f32 v{T}, v{T}, v{T+1}')
    A(f'v_mov_b32 v{T+1}, v{T}')
    A(f'v_permlane32_swap_b32 v{T}, v{T+1}')
    A(f'v_max_f32 v{T}, v{T}, v{T+1}')
    for i in range(4): A(f'v_sub_f32 v{V_NM+4*j+i}, 0, v{T}')
    for i in range(8): A(f'v_sub_f32 {r(i)}, {r(i)}, v{T}')

def attn_tile(A, q4):
    mf = QK(0) + PV(2) + QK(1) + PV(0) + QK(2) + PV(1)
    g = {k: [] for k in range(51)}
    for i in range(5, 8): g[i - 5].append(E(2, i))
    g[3] += [Cv(2, 0), Cv(2, 1)]; g[4] += [Cv(2, 2), Cv(2, 3)]
    g[5].append('s_nop 0')
    if q4 == 3:
        g[42] += [f's_xor_b32 s{S_DBASE}, s{S_DBASE}, 0x10000']
        for u in range(8): g[42 + u // 2].append(f'v_xor_b32 v{V_VA+u}, s{S_C64K}, v{V_VA+u}')
    if q4 == 2:
        for st in range(4): g[42 + st // 2].append(f'v_xor_b32 v{V_KA+st}, s{S_C64K}, v{V_KA+st}')
    g[6].append(E(0, 0)); g[7].append(E(0, 1))
    for u in range(7): g[8 + 2 * u] += [Vr(u, 0, q4), Vr(u, 1, q4)]
    for i in range(2, 8): g[9 + 2 * (i - 2)].append(E(0, i))
    g[21] += [Cv(0, 0), Cv(0, 1)]; g[22] += [Cv(0, 2), Cv(0, 3)]
    g[23] += [Vr(7, 0, q4), Vr(7, 1, q4)]
    g[24].append('s_waitcnt lgkmcnt(8)')
    g[28].append('s_waitcnt lgkmcnt(2)')
    g[31].append('s_waitcnt lgkmcnt(0)')
    for i in range(8): g[24 + i].append(E(1, i))
    g[32] += [Cv(1, 0), Cv(1, 1)]
    g[33] += [Cv(1, 2), Cv(1, 3), f's_waitcnt vmcnt(24)', 's_barrier']
    d = kv_dma(q4)
    nq = (q4 + 1) & 3
    g[34] += [d[0][0], Kr(0, nq), d[0][1]]
    g[35] += [Kr(1, nq), d[1][0]]
    g[36] += [d[2][0], Kr(2, nq), d[2][1]]
    g[37] += [Kr(3, nq), d[3][0]]
    g[38] += [f's_add_u32 s{S_GOFF}, s{S_GOFF}, 8192', Kr(4, nq)]
    for f in range(5, 8): g[34 + f].append(Kr(f, nq))
    for i in range(5): g[46 + i].append(E(2, i))
    g[49].insert(0, 's_waitcnt lgkmcnt(0)')
    if q4 == 3:
        g[47].insert(0, f's_add_u32 s{S_IT}, s{S_IT}, 1')
        g[48].insert(0, f's_cmp_lt_u32 s{S_IT}, 8')
        g[50].append('s_cbranch_scc1 L1_t0')
    for k, m in enumerate(mf):
        A(m)
        for x in g[k]: A(x)

def k1_attention(A, ST, vm):
    A(f's_waitcnt vmcnt({vm.count_after([("kv", 0)])})')
    A('s_barrier')
    for f in range(8): A(Kr(f, 0))
    for u in range(8): A(Vr(u, 0, 0)); A(Vr(u, 1, 0))
    A('s_waitcnt lgkmcnt(15)')
    A('s_waitcnt lgkmcnt(0)')
    ST.hit(); OPT['stamps'] and vm.issue('stamp')
    for m in QK(0, True) + QK(1, True) + QK(2, True): A(m)
    A(f's_waitcnt vmcnt({vm.count_after([("kv", 1)])})')
    A('s_barrier')
    A(f's_mov_b32 s{S_GOFF}, {8 * 8192}')
    d = kv_dma(0)
    for x in d[0][:1] + [Kr(0, 1)] + d[0][1:] + d[1] + d[2][:1] + [Kr(1, 1)] + d[2][1:] + d[3]: A(x)
    for f in range(2, 8): A(Kr(f, 1))
    A(f's_mov_b32 s{S_GOFF}, {9 * 8192}')
    A(f's_mov_b32 s{S_IT}, 0')
    softmax_first(A, 0)
    for i in range(8): A(E(0, i))
    for k in range(4): A(Cv(0, k))
    softmax_first(A, 1)
    interleave(A, PV(0, True), [(E(1, i), None) for i in range(8)], per_gap=1)
    for k in range(4): A(Cv(1, k))
    softmax_first(A, 2)
    interleave(A, PV(1, True), [(E(2, i), None) for i in range(5)], per_gap=1)
    for i in range(32): A(f'v_mov_b32 v{Oreg(2,0)+i}, 0')
    for i in range(4): A(f'v_mov_b32 v{V_L+8+i}, 0')
    A('s_waitcnt lgkmcnt(0)')
    A('s_branch L1_t1')
    A.raw('.p2align 6')
    A.label('L1_t0', reset=True)
    attn_tile(A, 0)
    A.label('L1_t1')
    attn_tile(A, 1)
    attn_tile(A, 2)
    attn_tile(A, 3)
    A.label('L1_loopend')
    for i in range(5, 8): A(E(2, i))
    for k in range(4): A(Cv(2, k))
    for m in PV(2): A(m)
    ST.hit()

def k1_epilogue(A, ST):
    T = V_T
    A(f'v_add_f32 v{T}, v{V_L}, v{V_L+4}')
    A(f'v_add_f32 v{T}, v{T}, v{V_L+8}')
    A(f'v_cmp_nge_f32 vcc, 0x5d800000, v{T}')
    A('s_cbranch_vccnz L1_slow')
    A.label('L1_fin')
    for j in range(3): A(f'v_rcp_f32 v{V_L+4*j}, v{V_L+4*j}')
    for j in range(3): A(f'v_mov_b32 v{V_L+4*j+1}, v{V_L+4*j}')
    A(f'v_lshlrev_b32 v{T}, 4, v0')
    A(f's_mov_b32 s{S_TMP}, 0')
    for j in range(3):
        if j: A(f's_mov_b32 s{S_TMP}, {131072 * j}')
        for st in range(4):
            o = Oreg(j, 2 * st)
            for i in range(4): A(f'v_pk_mul_f32 {v(o+2*i,2)}, {v(o+2*i,2)}, {v(V_L+4*j,2)}')
            for i in range(4): A(f'v_cvt_pk_bf16_f32 v{o+i}, v{o+2*i}, v{o+2*i+1}')
            A(f'buffer_store_dwordx4 {v(o,4)}, v{T}, s[{S_O}:{S_O+3}], s{S_TMP} offen offset:{1024*st}')
    if OPT['stamps']:
        A('s_waitcnt vmcnt(0)')
        ST.hit()
    A.label('L1_end')
    A('s_endpgm')

def k1_slow(A):
    T = V_T
    A.label('L1_slow', reset=True)
    A('s_nop 7')
    A(f's_mov_b32 s{S_K+2}, {KV_BYTES}')
    A(f's_mov_b32 s{S_V+2}, {KV_BYTES}')
    A('s_waitcnt vmcnt(0) lgkmcnt(0)')
    for i in range(96): A(f'v_mov_b32 v{V_O+i}, 0')
    for i in range(12): A(f'v_mov_b32 v{V_L+i}, 0')
    for j in range(3): A(f'v_mov_b32 v{V_NM+4*j}, 0xff7fffff')
    A('v_and_b32 v1, 15, v0')
    A('v_lshrrev_b32 v2, 4, v0')
    A(f'v_lshlrev_b32 v{V_KA}, 8, v1')
    A(f'v_lshl_add_u32 v{V_KA}, v2, 4, v{V_KA}')
    A(f'v_add_u32 v{V_KA+1}, 0x1000, v{V_KA}')
    A(f'v_lshlrev_b32 v{V_KA+2}, 10, v2')
    A(f'v_lshl_add_u32 v{V_KA+2}, v1, 1, v{V_KA+2}')
    A(f'v_add_u32 v{V_KA+3}, 0x1000, v{V_KA+2}')
    A(f's_mov_b32 s{S_GOFF}, 0')
    A.label('L1_slow_loop')
    for f in range(8):
        A(f'buffer_load_dwordx4 {a(A_K+4*f,4)}, v{V_KA + (f >> 2)}, s[{S_K}:{S_K+3}], s{S_GOFF} offen offset:{64*(f&3)}')
    for u in range(8):
        for jj in range(2):
            for r in range(4):
                A(f'buffer_load_ushort v{V_VA + 4*jj + r}, v{V_KA+2+jj}, s[{S_V}:{S_V+3}], s{S_GOFF} offen offset:{256*r + 32*u}')
        A('s_waitcnt vmcnt(0)')
        for k in range(4):
            A(f'v_lshl_or_b32 v{T+k}, v{V_VA+2*k+1}, 16, v{V_VA+2*k}')
        for k in range(4):
            A(f'v_accvgpr_write_b32 a{A_V+4*u+k}, v{T+k}')
    for j in range(3):
        for m in QK(j, True): A(m)
        r = lambda i: f'v{Sreg(j,i)}'
        A(f'v_max3_f32 v{T}, {r(0)}, {r(1)}, {r(2)}')
        A(f'v_max3_f32 v{T+1}, {r(3)}, {r(4)}, {r(5)}')
        A(f'v_max3_f32 v{T}, v{T}, {r(6)}, {r(7)}')
        A(f'v_max_f32 v{T}, v{T}, v{T+1}')
        A(f'v_mov_b32 v{T+1}, v{T}')
        A(f'v_permlane16_swap_b32 v{T}, v{T+1}')
        A(f'v_max_f32 v{T}, v{T}, v{T+1}')
        A(f'v_mov_b32 v{T+1}, v{T}')
        A(f'v_permlane32_swap_b32 v{T}, v{T+1}')
        A(f'v_max3_f32 v{T}, v{T}, v{T+1}, v{V_NM+4*j}')
        A(f'v_sub_f32 v{T+1}, v{V_NM+4*j}, v{T}')
        A(f'v_exp_f32 v{T+1}, v{T+1}')
        A(f'v_mov_b32 v{V_NM+4*j}, v{T}')
        for i in range(8): A(f'v_sub_f32 {r(i)}, {r(i)}, v{T}')
        for i in range(8): A(E(j, i))
        for i in range(32): A(f'v_mul_f32 v{Oreg(j,0)+i}, v{Oreg(j,0)+i}, v{T+1}')
        for i in range(4): A(f'v_mul_f32 v{V_L+4*j+i}, v{V_L+4*j+i}, v{T+1}')
        for k in range(4): A(Cv(j, k))
        for m in PV(j): A(m)
    A(f's_add_u32 s{S_GOFF}, s{S_GOFF}, 8192')
    A(f's_cmp_lt_u32 s{S_GOFF}, {KV_BYTES}')
    A('s_nop 7')
    A('s_cbranch_scc1 L1_slow_loop')
    A('s_nop 7')
    A('s_branch L1_fin')

def gen_k1():
    A = Asm()
    ST = Stamps(A, 0)
    A.label('attn_kernel')
    k1_prologue(A, ST)
    vm = k1_qproj(A, ST)
    k1_attention(A, ST, vm)
    k1_epilogue(A, ST)
    k1_slow(A)
    body = A.segment('L1_t0', 'L1_loopend')
    bad = check_trace(body + body, 'attn loop')
    pre = A.segment('attn_kernel', 'L1_t0')
    bad += check_trace(pre[-40:] + A.segment('L1_t1', 'L1_loopend')[:60], 'attn entry')
    assert not bad
    npad = sum(1 for i in body if 'pad before' in i.text)
    print('K1: instructions', sum(1 for x in A.items if not isinstance(x, str)), 'pads', A.inserted, 'pads in loop', npad, file=sys.stderr)
    return A.text()

def gen_k2():
    A = Asm()
    ST = Stamps(A, 1)
    S_OB, S_WO, S_OUT = 32, 36, 40
    S_W, S_BR, S_B, S_RH, S_CG, S_TMP, S_M0, S_WOFF, S_OOFF, S_IT = 52, 53, 54, 55, 56, 57, 58, 59, 60, 61
    V_ACC = 16
    V_B = 80
    V_DW = 176
    V_DO = 181
    V_AA = 184
    T = 190
    A.label('oproj_kernel')
    A('s_cmp_ge_u32 s2, 256')
    A('s_cbranch_scc1 L2_end')
    load_kernargs(A)
    A('v_lshrrev_b32 v1, 6, v0')
    A('v_and_b32 v0, 63, v0')
    A(f'v_readfirstlane_b32 s{S_W}, v1')
    A('s_and_b32 s3, s2, 7')
    A(f's_lshr_b32 s{S_BR}, s3, 2')
    A(f's_lshr_b32 s{S_TMP}, s2, 3')
    A(f's_bfe_u32 s{S_B}, s3, 0x10001')
    A(f's_lshl_b32 s{S_B}, s{S_B}, 2')
    A(f's_lshr_b32 s30, s{S_TMP}, 3')
    A(f's_add_u32 s{S_B}, s{S_B}, s30')
    A(f's_bfe_u32 s{S_RH}, s{S_TMP}, 0x10002')
    A(f's_and_b32 s{S_CG}, s3, 1')
    A(f's_lshl_b32 s{S_CG}, s{S_CG}, 2')
    A(f's_and_b32 s30, s{S_TMP}, 3')
    A(f's_add_u32 s{S_CG}, s{S_CG}, s30')
    A(f's_movk_i32 s30, 6554')
    A(f's_movk_i32 s31, 1152')
    for i in range(5):
        A(f'v_add_u32 v{T}, {64*i}, v0')
        A(f'v_mul_u32_u24 v{T+1}, s30, v{T}')
        A(f'v_lshrrev_b32 v{T+1}, 16, v{T+1}')
        A(f'v_mul_u32_u24 v{T+2}, 10, v{T+1}')
        A(f'v_sub_u32 v{T+2}, v{T}, v{T+2}')
        A(f'v_mul_u32_u24 v{T+1}, s31, v{T+1}')
        A(f'v_lshl_add_u32 v{V_DW+i}, v{T+2}, 4, v{T+1}')
        if 0 < i < 4: A(f'v_subrev_u32 v{V_DW+i}, {1024*i}, v{V_DW+i}')
    A(f's_lshl_b32 s30, s{S_W}, 15')
    A(f'v_lshlrev_b32 v{V_DO}, 4, v0')
    A(f'v_add_u32 v{V_DO}, s30, v{V_DO}')
    A(f'v_add_u32 v{V_DO+1}, 0x20000, v{V_DO}')
    A(f'v_add_u32 v{V_DO+2}, 0x40000, v{V_DO}')
    A(f'v_lshrrev_b32 v{T}, 2, v0')
    A(f'v_mul_u32_u24 v{T}, 160, v{T}')
    A(f'v_and_b32 v{T+1}, 3, v0')
    A(f'v_lshl_add_u32 v{T}, v{T+1}, 3, v{T}')
    A(f's_mul_i32 s{S_M0}, s{S_W}, 40960')
    A(f'v_add_u32 v{V_AA}, s{S_M0}, v{T}')
    A('s_waitcnt lgkmcnt(0)')
    A(f's_cmp_eq_u32 s{S_BR}, 0')
    A('s_cselect_b32 s12, s12, s22'); A('s_cselect_b32 s13, s13, s23')
    A(f's_mul_i32 s3, s{S_CG}, 144')
    A('s_add_u32 s12, s12, s3'); A('s_addc_u32 s13, s13, 0')
    srd(A, S_WO, 's12', 's13', W_BYTES)
    A(f's_sub_u32 s{S_WO+2}, s{S_WO+2}, s3')
    A(f's_lshl_b32 s3, s{S_BR}, 3')
    A(f's_add_u32 s3, s3, s{S_B}')
    A(f's_lshl_b32 s3, s3, 1')
    A(f's_add_u32 s3, s3, s{S_RH}')
    A(f's_mul_i32 s3, s3, {O_GROUP // 2}')
    A('s_add_u32 s30, s28, s3'); A('s_addc_u32 s31, s29, 0')
    srd(A, S_OB, 's30', 's31', O_GROUP // 2)
    A(f's_mul_i32 s{S_WOFF}, s{S_W}, {1024 * 1152}')
    A(f's_mov_b32 s{S_OOFF}, 0')
    ST.setup(S_W); ST.hit()
    def loads(slot):
        out = [f's_add_u32 m0, s{S_M0}, {5120 * slot}']
        out += [f'buffer_load_dwordx4 {v(V_B + 12*slot + 4*j, 4)}, v{V_DO+j}, s[{S_OB}:{S_OB+3}], s{S_OOFF} offen' for j in range(3)]
        out += [f'buffer_load_dwordx4 v{V_DW+i}, s[{S_WO}:{S_WO+3}], s{S_WOFF} offen offset:{1024*i} lds' for i in range(4)]
        out += [f's_add_u32 m0, s{S_M0}, {5120 * slot + 4096}', f's_add_u32 s{S_OOFF}, s{S_OOFF}, 1024']
        out += [f'buffer_load_dwordx4 v{V_DW+4}, s[{S_WO}:{S_WO+3}], s{S_WOFF} offen lds']
        out += [f's_add_u32 s{S_WOFF}, s{S_WOFF}, {32 * 1152}']
        return out
    def areads(slot):
        return [f'ds_read_b64_tr_b16 {a(20*(slot&1) + 4*nt + 2*jj, 2)}, v{V_AA} offset:{5120*slot + 2560*jj + 32*nt}'
                for nt in range(5) for jj in range(2)]
    for sl in range(7):
        for x in loads(sl): A(x)
    A(f's_mul_i32 s3, s{S_B}, 96')
    A(f's_mul_i32 s30, s{S_RH}, 48')
    A('s_add_u32 s3, s3, s30')
    A('s_mul_i32 s3, s3, 2304')
    A(f's_mul_i32 s30, s{S_BR}, 1152')
    A('s_add_u32 s3, s3, s30')
    A(f's_mul_i32 s30, s{S_CG}, 144')
    A('s_add_u32 s3, s3, s30')
    A('s_add_u32 s24, s24, s3'); A('s_addc_u32 s25, s25, 0')
    srd(A, S_OUT, 's24', 's25', OUT_BYTES)
    A(f's_sub_u32 s{S_OUT+2}, s{S_OUT+2}, s3')
    for i in range(60): A(f'v_mov_b32 v{V_ACC+i}, 0')
    A(f's_mov_b32 s{S_IT}, 0')
    A('s_waitcnt vmcnt(48)')
    ST.hit()
    for x in areads(0): A(x)
    A.raw('.p2align 6')
    A.label('L2_loop')
    extra = 1 if OPT['stamps'] else 0
    for sl in range(8):
        A(f's_waitcnt vmcnt(40) lgkmcnt(0)')
        mf = [f'{MF} {v(V_ACC + 4*(5*j+nt), 4)}, {a(20*(sl&1) + 4*nt, 4)}, {v(V_B + 12*sl + 4*j, 4)}, {v(V_ACC + 4*(5*j+nt), 4)}'
              for nt in range(5) for j in range(3)]
        rd = areads((sl + 1) & 7)
        ld = loads((sl + 7) & 7)
        if sl == 0:
            ld += [f's_cmp_eq_u32 s{S_IT}, 3', f's_cselect_b32 s{S_WO+2}, 0, s{S_WO+2}', f's_cselect_b32 s{S_OB+2}, 0, s{S_OB+2}']
        if sl == 7:
            ld += [f's_add_u32 s{S_IT}, s{S_IT}, 1', f's_cmp_lt_u32 s{S_IT}, 4']
        ri = li = 0
        for k, m in enumerate(mf):
            A(m)
            if k < 5:
                A(rd[ri]); A(rd[ri + 1]); ri += 2
            else:
                n = 0
                while li < len(ld) and n < 1:
                    A(ld[li]); n += ld[li].startswith('buffer_'); li += 1
        while li < len(ld): A(ld[li]); li += 1
    A('s_cbranch_scc1 L2_loop')
    A.label('L2_loopend')
    A('s_waitcnt vmcnt(0) lgkmcnt(0)')
    ST.hit()
    A(f'v_lshlrev_b32 v{T}, 4, v0')
    A(f'v_add_u32 v{T+1}, s{S_M0}, v{T}')
    for t in range(15): A(f'ds_write_b128 v{T+1}, {v(V_ACC+4*t,4)} offset:{1024*t}')
    A(f's_lshl_b32 s3, s{S_W}, 10')
    A(f'v_add_u32 v{T+2}, s3, v{T}')
    A(f'v_add_u32 v{T+3}, {2*40960}, v{T+2}')
    A('v_and_b32 v1, 15, v0')
    A('v_lshrrev_b32 v2, 4, v0')
    A(f'v_mul_u32_u24 v{T+4}, 2304, v1')
    A(f'v_lshl_add_u32 v{T+4}, v2, 3, v{T+4}')
    A(f'v_mov_b32 v{T+5}, 0x7fffffff')
    A('v_cmp_gt_u32 vcc, 2, v2')
    A(f'v_cndmask_b32 v{T+5}, v{T+5}, v{T+4}, vcc')
    A('s_waitcnt lgkmcnt(0)')
    A('s_barrier')
    for n in range(4):
        for ww in range(4):
            A(f'ds_read_b128 {v(V_B + 16*n + 4*ww, 4)}, v{T+2+(ww>>1)} offset:{40960*(ww&1) + 4096*n}')
    for n in range(4):
        A(f's_add_u32 s3, s{S_W}, {4*n}')
        A('s_mul_i32 s30, s3, 52')
        A('s_lshr_b32 s30, s30, 8')
        A('s_mul_i32 s31, s30, 5')
        A('s_sub_u32 s31, s3, s31')
        A('s_cmp_eq_u32 s31, 4')
        A('s_cselect_b64 vcc, -1, 0')
        A(f's_mul_i32 s30, s30, {16 * 2304}')
        A('s_lshl_b32 s31, s31, 5')
        A('s_add_u32 s30, s30, s31')
        if n == 3:
            A('s_cmp_eq_u32 s3, 15')
            A(f's_cselect_b32 s{S_OUT+2}, 0, s{S_OUT+2}')
        A(f's_waitcnt lgkmcnt({12 - 4*n})')
        b = V_B + 16 * n
        for i in range(0, 4, 2):
            A(f'v_pk_add_f32 {v(b+i,2)}, {v(b+i,2)}, {v(b+4+i,2)}')
            A(f'v_pk_add_f32 {v(b+8+i,2)}, {v(b+8+i,2)}, {v(b+12+i,2)}')
        for i in range(0, 4, 2):
            A(f'v_pk_add_f32 {v(b+i,2)}, {v(b+i,2)}, {v(b+8+i,2)}')
        A(f'v_cndmask_b32 v{T+6}, v{T+4}, v{T+5}, vcc')
        A(f'v_cvt_pk_bf16_f32 v{b}, v{b}, v{b+1}')
        A(f'v_cvt_pk_bf16_f32 v{b+1}, v{b+2}, v{b+3}')
        A(f'buffer_store_dwordx2 {v(b,2)}, v{T+6}, s[{S_OUT}:{S_OUT+3}], s30 offen')
    if OPT['stamps']:
        A('s_waitcnt vmcnt(0)')
        ST.hit()
    A.label('L2_end')
    A('s_endpgm')
    body = A.segment('L2_loop', 'L2_loopend')
    assert not check_trace(body + body, 'oproj loop')
    print('K2: instructions', sum(1 for x in A.items if not isinstance(x, str)), 'pads', A.inserted, file=sys.stderr)
    return A.text()

def kd(name, nv, acc):
    return f""".amdhsa_kernel {name}
  .amdhsa_next_free_vgpr {nv}
  .amdhsa_next_free_sgpr 102
  .amdhsa_accum_offset {acc}
  .amdhsa_group_segment_fixed_size 0
  .amdhsa_kernarg_size 104
  .amdhsa_user_sgpr_count 2
  .amdhsa_user_sgpr_kernarg_segment_ptr 1
  .amdhsa_system_sgpr_workgroup_id_x 1
.end_amdhsa_kernel
"""

def main():
    ref = open(f'cdna_kernels/{NAME}.s.ref').read().split('\n')
    head = [l for l in ref if l.startswith(';') and '@launch' not in l and 'Override launch' not in l and 'grid=ceil' not in l]
    out = '\n'.join(head) + '\n'
    out += '; @launch kernel=attn_kernel grid=(256,1,1) block=(256,1,1) lds=163840\n'
    out += '; @launch kernel=oproj_kernel grid=(256,1,1) block=(256,1,1) lds=163840\n'
    out += '.amdgcn_target "amdgcn-amd-amdhsa--gfx950"\n.text\n'
    out += '.globl attn_kernel\n.p2align 8\n.type attn_kernel,@function\n' + gen_k1()
    out += '.globl oproj_kernel\n.p2align 8\n.type oproj_kernel,@function\n' + gen_k2()
    out += '.section .rodata,"a"\n.p2align 6\n' + kd('attn_kernel', 512, 256) + '.p2align 6\n' + kd('oproj_kernel', 512, 256)
    open(sys.argv[1], 'w').write(out)

main()
```
